```python
import torch

def _softmax(x, axis=-1):
    return torch.softmax(x, dim=axis)
def _gelu(x):
    return torch.nn.functional.gelu(x, approximate="tanh")
def _silu(x):
    return torch.nn.functional.silu(x)
def _sigmoid(x):
    return torch.sigmoid(x)
def _layernorm(x, axis=-1, eps=1e-5):
    m = x.mean(dim=axis, keepdim=True)
    v = x.var(dim=axis, keepdim=True, unbiased=False)
    return (x - m) / torch.sqrt(v + eps)
def _scatter_add(tgt, idx, src, axis=0):
    return tgt.clone().index_add_(axis, idx, src)
def _segment_sum(src, seg, n):
    out = torch.zeros((n,) + src.shape[1:], dtype=src.dtype)
    return out.index_add_(0, seg, src)
def _pad(x, pw):
    flat = tuple(v for pair in reversed(pw) for v in pair)
    return torch.nn.functional.pad(x, flat)

kernel_name = 'parallel_sum__sliding_block_cached__glu_gated_glu__decode'

def setup_inputs():

    _w = (lambda a: (lambda t: t.to(torch.bfloat16) if t.is_floating_point() else t)(torch.as_tensor(a)))
    def _A_setup():
        B, Sq, D = 1, 1, 448
        Hq, Hkv, Sk, Dh = 16, 8, 65536, 256
        assert Hq % Hkv == 0, (Hq, Hkv)
        return {
            "x": _w((lambda *s: torch.randn(*s, dtype=torch.bfloat16) * 0.05)(B, Sq, D)),
            "k_cache": _w((lambda *s: torch.randn(*s, dtype=torch.bfloat16) * 3.2)(B, Hkv, Sk, Dh)),
            "v_cache": _w((lambda *s: torch.randn(*s, dtype=torch.bfloat16) * 1.6)(B, Hkv, Sk, Dh)),
            "wq": _w((lambda *s: torch.randn(*s, dtype=torch.bfloat16) * 3.2)(D, Hq * Dh) * (D ** -0.5)),
            "wo": _w((lambda *s: torch.randn(*s, dtype=torch.bfloat16) * 1.6)(Hq * Dh, D) * ((Hq * Dh) ** -0.5)),
        }
    _A_in = _A_setup()

    def _B_setup():
        B, S, D, F = 1, 1, 448, 1792
        return {
            "x": _w((lambda *s: torch.randn(*s, dtype=torch.bfloat16) * 0.05)(B, S, D)),
            "w_gate": _w((lambda *s: torch.randn(*s, dtype=torch.bfloat16) * 0.1)(D, F)),
            "w_up": _w((lambda *s: torch.randn(*s, dtype=torch.bfloat16) * 0.05)(D, F)),
            "w_down": _w((lambda *s: torch.randn(*s, dtype=torch.bfloat16) * 0.05)(F, D)),
        }
    _B_in = _B_setup()

    return {
        "A_x": _A_in["x"],
        "A_k_cache": _A_in["k_cache"],
        "A_v_cache": _A_in["v_cache"],
        "A_wq": _A_in["wq"],
        "A_wo": _A_in["wo"],
        "B_x": _B_in["x"],
        "B_w_gate": _B_in["w_gate"],
        "B_w_up": _B_in["w_up"],
        "B_w_down": _B_in["w_down"],
    }

def reference(A_x, A_k_cache, A_v_cache, A_wq, A_wo, B_x, B_w_gate, B_w_up, B_w_down):
    def _A_ref(x, k_cache, v_cache, wq, wo):
        B, Sq, D = x.shape
        Hq, Dh = 16, 256
        Hkv, Sk = k_cache.shape[1], k_cache.shape[2]
        W = min(4096, max(256, Sk // 4))
        rep = Hq // Hkv
        q = (lambda x, *d: x.permute(*d))((x @ wq).reshape(B, Sq, Hq, Dh), 0, 2, 1, 3)
        k = (lambda x, n, axis: torch.repeat_interleave(x, n, dim=axis))(k_cache[:, :, Sk - W:, :], rep, axis=1)
        v = (lambda x, n, axis: torch.repeat_interleave(x, n, dim=axis))(v_cache[:, :, Sk - W:, :], rep, axis=1)
        scores = torch.einsum("bhqd,bhkd->bhqk", q, k) * (Dh ** -0.5)
        p = _softmax(scores, axis=-1)
        o = torch.einsum("bhqk,bhkd->bhqd", p, v)
        return (lambda x, *d: x.permute(*d))(o, 0, 2, 1, 3).reshape(B, Sq, Hq * Dh) @ wo

    def _B_ref(x, w_gate, w_up, w_down):
        g = torch.einsum("bsd,df->bsf", x, w_gate)
        u = torch.einsum("bsd,df->bsf", x, w_up)
        h = _sigmoid(g) * u
        return torch.einsum("bsf,fd->bsd", h, w_down)

    x = A_x
    xn = _layernorm(x, axis=-1)
    return x + _A_ref(xn, A_k_cache, A_v_cache, A_wq, A_wo) + _B_ref(xn, B_w_gate, B_w_up, B_w_down)
```

```python
import sys

L = []
def e(s=""):
    L.append(s)

WS_QP   = 0x00000
WS_GUP  = 0x20000
WS_OP   = 0x40000
WS_ML   = 0xC0000
WS_ACC  = 0x100000
WS_SIZE = 1073741824

DBG_Q = 0
DBG_P = 32
DBG_G = 64
DBG_F = 96

LDS_QS = 0
LDS_SC = 1024
LDS_PB = 2048
LDS_SCR = 4096
LDS_V = 12288
LDS_RED = 12288
LDS_ACC = 12288 + 2048
LDS_TOTAL = 12288 + 65536

def wave_reduce(op, v, sa):
    e(f"    s_nop 1")
    e(f"    {op}_dpp {v}, {v}, {v} quad_perm:[1,0,3,2] row_mask:0xf bank_mask:0xf")
    e(f"    s_nop 1")
    e(f"    {op}_dpp {v}, {v}, {v} quad_perm:[2,3,0,1] row_mask:0xf bank_mask:0xf")
    e(f"    s_nop 1")
    e(f"    {op}_dpp {v}, {v}, {v} row_half_mirror row_mask:0xf bank_mask:0xf")
    e(f"    s_nop 1")
    e(f"    {op}_dpp {v}, {v}, {v} row_mirror row_mask:0xf bank_mask:0xf")
    e(f"    s_nop 1")
    e(f"    v_readlane_b32 s{sa}, {v}, 0")
    e(f"    v_readlane_b32 s{sa+1}, {v}, 16")
    e(f"    v_readlane_b32 s{sa+2}, {v}, 32")
    e(f"    v_readlane_b32 s{sa+3}, {v}, 48")
    e(f"    s_nop 1")
    e(f"    v_mov_b32 {v}, s{sa}")
    e(f"    {op} {v}, s{sa+1}, {v}")
    e(f"    {op} {v}, s{sa+2}, {v}")
    e(f"    {op} {v}, s{sa+3}, {v}")

def rne_bf16(v):
    e(f"    v_cvt_pk_bf16_f32 {v}, {v}, {v}")
    e(f"    v_lshlrev_b32 {v}, 16, {v}")

def srd(d, base, size):
    e(f"    s_mov_b32 s{d}, s{base}")
    e(f"    s_mov_b32 s{d+1}, s{base+1}")
    e(f"    s_mov_b32 s{d+2}, {size}")
    e(f"    s_mov_b32 s{d+3}, 0x00020000")

NAME = "parallel_sum__sliding_block_cached__glu_gated_glu__decode_kernel"
e(f"; @launch grid=(256,1,1) block=(576,1,1) lds={LDS_TOTAL}")
e('.amdgcn_target "amdgcn-amd-amdhsa--gfx950"')
e(".text")
e(f".globl {NAME}")
e(".p2align 8")
e(f".type {NAME},@function")
e(f"{NAME}:")
e("    s_cmp_ge_u32 s2, 256")
e("    s_cbranch_scc1 k_end")
e("    s_load_dwordx8 s[64:71], s[0:1], 0")
e("    s_load_dwordx8 s[72:79], s[0:1], 32")
e("    s_load_dwordx8 s[80:87], s[0:1], 64")
e("    v_lshrrev_b32 v1, 6, v0")
e("    v_and_b32 v2, 63, v0")
e("    s_nop 0")
e("    v_readfirstlane_b32 s14, v1")
e("    s_lshr_b32 s15, s2, 5")
e("    s_and_b32 s16, s2, 31")
e("    s_waitcnt lgkmcnt(0)")
srd(36, 86, WS_SIZE)
e("    s_cmp_eq_u32 s14, 8")
e("    s_cbranch_scc1 sync_wave")
e("    s_lshl_b32 s17, s15, 25")
e("    s_lshl_b32 s18, s16, 16")
e("    s_add_u32 s17, s17, s18")
e(f"    s_add_u32 s17, s17, {61440*512}")
e("    s_add_u32 s4, s66, s17")
e("    s_addc_u32 s5, s67, 0")
e("    s_add_u32 s6, s68, s17")
e("    s_addc_u32 s7, s69, 0")
srd(20, 4, 65536)
srd(24, 6, 65536)
srd(32, 64, 896)
srd(44, 72, 4096*896)
srd(48, 80, 1792*896)
e("    v_and_b32 v3, 15, v2")
e("    v_lshrrev_b32 v4, 4, v2")
e("    s_cmp_ge_u32 s14, 4")
e("    s_cbranch_scc1 proj_done")
e("    s_cmp_ge_u32 s14, 2")
e("    s_cbranch_scc1 proj_gu")
e("    s_lshl_b32 s17, s16, 1")
e("    s_add_u32 s17, s17, s14")
e("    s_lshr_b32 s18, s17, 3")
e("    s_and_b32 s19, s17, 7")
e("    s_mov_b32 s28, s70")
e("    s_mov_b32 s29, s71")
e(f"    s_mov_b32 s30, {448*8192}")
e("    s_mov_b32 s52, 8192")
e("    s_lshl_b32 s53, s15, 10")
e("    s_lshl_b32 s54, s18, 7")
e("    s_add_u32 s53, s53, s54")
e("    s_lshl_b32 s54, s19, 14")
e("    s_lshl_b32 s55, s15, 11")
e("    s_add_u32 s54, s54, s55")
e("    s_lshl_b32 s55, s18, 8")
e("    s_add_u32 s54, s54, s55")
e(f"    s_add_u32 s54, s54, {WS_QP}")
e("    s_lshl_b32 s56, s15, 2")
e(f"    s_add_u32 s56, s56, {DBG_Q}")
e("    s_branch proj_sel_done")
e("proj_gu:")
e("    s_cmp_ge_u32 s2, 224")
e("    s_cbranch_scc1 proj_done")
e("    s_lshl_b32 s17, s2, 1")
e("    s_add_u32 s17, s17, s14")
e("    s_sub_u32 s17, s17, 2")
e("    s_lshr_b32 s18, s17, 3")
e("    s_and_b32 s19, s17, 7")
e("    s_mov_b32 s52, 3584")
e(f"    s_mov_b32 s30, {448*3584}")
e("    s_mul_i32 s54, s19, 14336")
e("    s_lshl_b32 s55, s18, 8")
e("    s_add_u32 s54, s54, s55")
e(f"    s_add_u32 s54, s54, {WS_GUP}")
e("    s_and_b32 s56, s17, 7")
e("    s_lshl_b32 s56, s56, 2")
e(f"    s_add_u32 s56, s56, {DBG_G}")
e("    s_cmp_lt_u32 s18, 28")
e("    s_cbranch_scc0 proj_up")
e("    s_mov_b32 s28, s76")
e("    s_mov_b32 s29, s77")
e("    s_lshl_b32 s53, s18, 7")
e("    s_branch proj_sel_done")
e("proj_up:")
e("    s_mov_b32 s28, s78")
e("    s_mov_b32 s29, s79")
e("    s_sub_u32 s55, s18, 28")
e("    s_lshl_b32 s53, s55, 7")
e("proj_sel_done:")
e("    s_mov_b32 s31, 0x00020000")
e("    v_lshlrev_b32 v5, 1, v2")
for j in range(7):
    e(f"    buffer_load_ushort v{10+j}, v5, s[32:35], 0 offen offset:{j*128}")
e("    v_lshrrev_b32 v6, 3, v2")
e("    s_mul_i32 s57, s19, 56")
e("    v_add_u32 v5, s57, v6")
e("    v_lshlrev_b32 v5, 1, v5")
for j in range(7):
    e(f"    buffer_load_ushort v{20+j}, v5, s[32:35], 0 offen offset:{j*16}")
e("    v_mul_lo_u32 v7, v6, s52")
e("    v_and_b32 v8, 7, v2")
e("    v_lshlrev_b32 v8, 4, v8")
e("    v_add_u32 v7, v7, v8")
e("    s_mul_i32 s57, s57, s52")
e("    s_add_u32 s57, s57, s53")
e("    s_lshl_b32 s58, s52, 3")
for j in range(7):
    e(f"    buffer_load_dwordx4 v[{32+4*j}:{35+4*j}], v7, s[28:31], s57 offen")
    if j < 6:
        e("    s_add_u32 s57, s57, s58")
e("    s_waitcnt vmcnt(14)")
for j in range(7):
    e(f"    v_lshlrev_b32 v{10+j}, 16, v{10+j}")
e("    v_add_f32 v108, v10, v11")
for j in range(2, 7):
    e(f"    v_add_f32 v108, v108, v{10+j}")
wave_reduce("v_add_f32", "v108", 40)
e("    v_mul_f32 v108, 0x3b124925, v108")
e("    v_sub_f32 v109, v10, v108")
e("    v_mul_f32 v109, v109, v109")
for j in range(1, 7):
    e(f"    v_sub_f32 v17, v{10+j}, v108")
    e(f"    v_fmac_f32 v109, v17, v17")
wave_reduce("v_add_f32", "v109", 40)
e("    v_mul_f32 v109, 0x3b124925, v109")
rne_bf16("v108")
rne_bf16("v109")
e("    v_add_f32 v109, 0x3727c5ac, v109")
rne_bf16("v109")
e("    v_sqrt_f32 v109, v109")
e("    s_nop 0")
rne_bf16("v109")
e("    v_rcp_f32 v109, v109")
e("    s_waitcnt vmcnt(7)")
for j in range(7):
    e(f"    v_lshlrev_b32 v{20+j}, 16, v{20+j}")
    e(f"    v_sub_f32 v{20+j}, v{20+j}, v108")
    rne_bf16(f"v{20+j}")
    e(f"    v_mul_f32 v{20+j}, v{20+j}, v109")
    rne_bf16(f"v{20+j}")
for i in range(8):
    e(f"    v_mov_b32 v{64+i}, 0")
for j in range(7):
    e(f"    s_waitcnt vmcnt({6-j})")
    for i in range(4):
        r = 32 + 4*j + i
        e(f"    v_lshlrev_b32 v72, 16, v{r}")
        e(f"    v_and_b32 v73, 0xffff0000, v{r}")
        e(f"    v_fmac_f32 v{64+2*i}, v72, v{20+j}")
        e(f"    v_fmac_f32 v{65+2*i}, v73, v{20+j}")
e("    s_lshl_b32 s57, s14, 11")
e(f"    s_add_u32 s57, s57, {LDS_SCR}")
e("    v_lshlrev_b32 v74, 8, v6")
e("    v_lshlrev_b32 v75, 1, v8")
e("    v_add3_u32 v74, v74, v75, s57")
e("    ds_write_b128 v74, v[64:67]")
e("    ds_write_b128 v74, v[68:71] offset:16")
e("    v_lshlrev_b32 v76, 2, v2")
e("    v_add_u32 v77, s57, v76")
e("    s_waitcnt lgkmcnt(0)")
for g in range(8):
    e(f"    ds_read_b32 v{80+g}, v77 offset:{g*256}")
e("    s_waitcnt lgkmcnt(0)")
e("    v_add_f32 v80, v80, v81")
for g in range(2, 8):
    e(f"    v_add_f32 v80, v80, v{80+g}")
e("    buffer_store_dword v80, v76, s[36:39], s54 offen sc1")
e("    s_or_b32 s57, s16, s14")
e("    s_cmp_lg_u32 s57, 0")
e("    s_cbranch_scc1 proj_nozero")
e("    v_mov_b32 v84, 0")
e("    v_mov_b32 v85, 0")
e("    v_mov_b32 v86, 0")
e("    v_mov_b32 v87, 0")
e("    v_lshlrev_b32 v88, 4, v2")
e("    s_lshl_b32 s57, s15, 12")
e(f"    s_add_u32 s57, s57, {WS_ACC}")
for t in range(4):
    e(f"    buffer_store_dwordx4 v[84:87], v88, s[36:39], s57 offen offset:{t*1024} sc1")
e("proj_nozero:")
e("    s_waitcnt vmcnt(0)")
e("    v_mov_b32 v84, 1")
e("    v_mov_b32 v85, s56")
e("    s_mov_b64 exec, 1")
e("    global_atomic_add v85, v84, s[84:85] sc1")
e("    s_mov_b64 exec, -1")
e("proj_done:")
e("    s_lshl_b32 s18, s14, 13")
e("    v_lshlrev_b32 v5, 9, v3")
e("    v_lshlrev_b32 v6, 4, v4")
e("    v_add3_u32 v5, v5, v6, s18")
for kk in range(8):
    e(f"    buffer_load_dwordx4 v[{32+4*kk}:{35+4*kk}], v5, s[20:23], 0 offen offset:{kk*64}")
e("    v_lshlrev_b32 v7, 4, v2")
e("    v_add_u32 v7, s18, v7")
e(f"    s_add_u32 s19, s18, {LDS_V}")
e("    s_mov_b32 m0, s19")
e("    s_nop 0")
for t in range(4):
    e(f"    buffer_load_dwordx4 v7, s[24:27], 0 offen offset:{t*1024} lds")
e(f"    s_add_u32 s19, s18, {LDS_V+4096}")
e("    s_mov_b32 m0, s19")
e("    v_add_u32 v7, 4096, v7")
for t in range(4):
    e(f"    buffer_load_dwordx4 v7, s[24:27], 0 offen offset:{t*1024} lds")
e("    s_lshr_b32 s57, s2, 4")
e("    s_lshl_b32 s57, s57, 8")
e("    s_and_b32 s58, s2, 15")
e("    s_lshl_b32 s58, s58, 4")
e("    s_add_u32 s57, s57, s58")
e("    s_lshl_b32 s58, s14, 1")
e("    s_add_u32 s57, s57, s58")
e("    s_mul_i32 s57, s57, 896")
e("    s_mul_i32 s59, s2, 7")
e("    s_add_u32 s59, s59, s14")
e("    s_mul_i32 s58, s59, 896")
e("    v_lshlrev_b32 v9, 4, v2")
e("    v_cmp_gt_u32 vcc, 56, v2")
e("    s_and_saveexec_b64 s[42:43], vcc")
e("    buffer_load_dwordx4 v[96:99], v9, s[44:47], s57 offen")
e("    buffer_load_dwordx4 v[100:103], v9, s[44:47], s57 offen offset:896")
e("    buffer_load_dwordx4 v[104:107], v9, s[48:51], s58 offen")
e("    s_mov_b64 exec, s[42:43]")
e("    s_barrier")
e("    s_lshl_b32 s19, s15, 11")
e("    v_lshlrev_b32 v8, 2, v0")
e("    v_add_u32 v8, s19, v8")
for ks in range(8):
    e(f"    s_mov_b32 s40, {WS_QP + ks*16384}")
    e(f"    buffer_load_dword v{10+ks}, v8, s[36:39], s40 offen sc1")
e("    s_waitcnt vmcnt(0)")
e("    v_add_f32 v10, v10, v11")
for ks in range(2, 8):
    e(f"    v_add_f32 v10, v10, v{10+ks}")
e("    v_cvt_pk_bf16_f32 v10, v10, v10")
e("    v_lshlrev_b32 v9, 1, v0")
e(f"    ds_write_b16 v9, v10 offset:{LDS_QS}")
e("    s_waitcnt lgkmcnt(0)")
e("    s_barrier")
e("    v_and_b32 v9, 1, v2")
e("    v_lshlrev_b32 v9, 9, v9")
e("    v_add_u32 v9, v9, v6")
for kk in range(8):
    e(f"    ds_read_b128 v[{64+4*kk}:{67+4*kk}], v9 offset:{LDS_QS + kk*64}")
for i in range(4):
    e(f"    v_mov_b32 v{112+i}, 0")
e("    s_waitcnt lgkmcnt(0)")
e("    s_nop 1")
for kk in range(8):
    e(f"    v_mfma_f32_16x16x32_bf16 v[112:115], v[{64+4*kk}:{67+4*kk}], v[{32+4*kk}:{35+4*kk}], v[112:115]")
e("    s_nop 7")
e("    s_nop 1")
rne_bf16("v112")
rne_bf16("v113")
e("    v_mul_f32 v112, 0x3d800000, v112")
e("    v_mul_f32 v113, 0x3d800000, v113")
e("    s_lshl_b32 s19, s14, 6")
e("    v_lshlrev_b32 v9, 2, v2")
e("    v_add_u32 v9, s19, v9")
e("    s_mov_b64 exec, 0xffff")
e(f"    ds_write_b32 v9, v112 offset:{LDS_SC}")
e(f"    ds_write_b32 v9, v113 offset:{LDS_SC+512}")
e("    s_mov_b64 exec, -1")
e("    s_waitcnt lgkmcnt(0)")
e("    s_barrier")
e("    v_lshlrev_b32 v9, 3, v2")
e(f"    ds_read_b64 v[10:11], v9 offset:{LDS_SC}")
e(f"    ds_read_b64 v[12:13], v9 offset:{LDS_SC+512}")
e("    s_waitcnt lgkmcnt(0)")
e("    v_max_f32 v14, v10, v11")
e("    v_max_f32 v15, v12, v13")
wave_reduce("v_max_f32", "v14", 40)
wave_reduce("v_max_f32", "v15", 40)
for (a, m) in ((10, 14), (11, 14), (12, 15), (13, 15)):
    e(f"    v_sub_f32 v{a}, v{a}, v{m}")
    e(f"    v_mul_f32 v{a}, 0x3fb8aa3b, v{a}")
    e(f"    v_exp_f32 v{a}, v{a}")
e("    s_nop 0")
e("    v_add_f32 v16, v10, v11")
e("    v_add_f32 v17, v12, v13")
wave_reduce("v_add_f32", "v16", 40)
wave_reduce("v_add_f32", "v17", 40)
e("    v_cvt_pk_bf16_f32 v18, v10, v11")
e("    v_cvt_pk_bf16_f32 v19, v12, v13")
e("    v_lshlrev_b32 v9, 2, v2")
e(f"    ds_write_b32 v9, v18 offset:{LDS_PB}")
e(f"    ds_write_b32 v9, v19 offset:{LDS_PB+256}")
e("    s_waitcnt lgkmcnt(0)")
e("    v_and_b32 v9, 1, v2")
e("    v_lshlrev_b32 v9, 8, v9")
e("    v_add_u32 v9, v9, v6")
for ks in range(4):
    e(f"    ds_read_b128 v[{64+4*ks}:{67+4*ks}], v9 offset:{LDS_PB + ks*64}")
e("    v_lshlrev_b32 v20, 12, v4")
e("    v_lshrrev_b32 v21, 2, v3")
e("    v_lshlrev_b32 v21, 9, v21")
e("    v_and_b32 v22, 3, v3")
e("    v_lshlrev_b32 v22, 3, v22")
e("    v_add3_u32 v20, v20, v21, v22")
e("    s_lshl_b32 s19, s14, 6")
e(f"    s_add_u32 s19, s19, {LDS_V}")
e("    v_add_u32 v20, s19, v20")
for nt in range(2):
    for i in range(4):
        e(f"    v_mov_b32 v{116+i}, 0")
    for ks in range(4):
        e(f"    ds_read_b64_tr_b16 v[{80+4*ks}:{81+4*ks}], v20 offset:{ks*16384 + nt*32}")
        e(f"    ds_read_b64_tr_b16 v[{82+4*ks}:{83+4*ks}], v20 offset:{ks*16384 + nt*32 + 2048}")
    e("    s_waitcnt lgkmcnt(0)")
    for ks in range(4):
        e(f"    v_mfma_f32_16x16x32_bf16 v[116:119], v[{64+4*ks}:{67+4*ks}], v[{80+4*ks}:{83+4*ks}], v[116:119]")
    e("    s_nop 7")
    e("    s_nop 1")
    e("    s_lshl_b32 s40, s2, 11")
    e(f"    s_add_u32 s40, s40, {WS_OP + nt*64}")
    e("    s_lshl_b32 s41, s14, 7")
    e("    s_add_u32 s40, s40, s41")
    e("    v_lshlrev_b32 v9, 2, v2")
    e("    s_mov_b64 exec, 0xffff")
    e("    buffer_store_dword v116, v9, s[36:39], s40 offen sc1")
    e("    buffer_store_dword v117, v9, s[36:39], s40 offen offset:1024 sc1")
    e("    s_mov_b64 exec, -1")
e("    s_cmp_lg_u32 s14, 0")
e("    s_cbranch_scc1 attn_noml")
e("    v_mov_b32 v24, v14")
e("    v_mov_b32 v25, v15")
e("    v_mov_b32 v26, v16")
e("    v_mov_b32 v27, v17")
e("    v_mov_b32 v9, 0")
e("    s_lshl_b32 s40, s2, 4")
e(f"    s_add_u32 s40, s40, {WS_ML}")
e("    s_mov_b64 exec, 1")
e("    buffer_store_dwordx4 v[24:27], v9, s[36:39], s40 offen sc1")
e("    s_mov_b64 exec, -1")
e("attn_noml:")
e("    s_waitcnt vmcnt(0)")
e("    s_barrier")
e("    s_barrier")
e("    s_lshr_b32 s57, s2, 4")
e("    s_and_b32 s58, s2, 15")
e("    s_and_b32 s60, s57, 1")
e("    s_lshl_b32 s46, s59, 2")
e("    v_mov_b32 v4, 0")
for ks in range(8):
    e(f"    s_add_u32 s47, s46, {WS_GUP + ks*14336}")
    e(f"    buffer_load_dword v{48+ks}, v4, s[36:39], s47 offen sc1")
    e(f"    s_add_u32 s48, s47, {1792*4}")
    e(f"    buffer_load_dword v{56+ks}, v4, s[36:39], s48 offen sc1")
e("    s_lshl_b32 s47, s15, 9")
e(f"    s_add_u32 s47, s47, {WS_ML}")
e("    v_and_b32 v5, 31, v2")
e("    v_lshlrev_b32 v5, 4, v5")
e("    buffer_load_dwordx4 v[64:67], v5, s[36:39], s47 offen sc1")
e("    v_lshrrev_b32 v6, 4, v0")
e("    v_and_b32 v7, 15, v0")
e("    v_lshlrev_b32 v8, 11, v6")
e("    v_lshlrev_b32 v9, 2, v7")
e("    v_add_u32 v8, v8, v9")
e("    s_lshl_b32 s61, s15, 16")
e("    s_lshl_b32 s48, s60, 10")
e("    s_add_u32 s61, s61, s48")
e("    s_lshl_b32 s48, s58, 6")
e("    s_add_u32 s61, s61, s48")
e(f"    s_add_u32 s61, s61, {WS_OP}")
e("    buffer_load_dword v68, v8, s[36:39], s61 offen sc1")
e("    v_lshlrev_b32 v9, 4, v6")
e("    buffer_load_dwordx4 v[72:75], v9, s[36:39], s47 offen sc1")
e("    s_waitcnt vmcnt(0)")
e("    s_cmp_eq_u32 s60, 1")
e("    s_cselect_b64 vcc, -1, 0")
e("    v_cndmask_b32 v64, v64, v65, vcc")
e("    v_cndmask_b32 v66, v66, v67, vcc")
e("    v_cndmask_b32 v72, v72, v73, vcc")
e("    v_mov_b32 v76, v64")
wave_reduce("v_max_f32", "v76", 40)
e("    v_sub_f32 v64, v64, v76")
e("    v_mul_f32 v64, 0x3fb8aa3b, v64")
e("    v_exp_f32 v64, v64")
e("    s_nop 0")
e("    v_mul_f32 v64, v64, v66")
e("    v_cmp_gt_u32 vcc, 32, v2")
e("    s_nop 1")
e("    v_cndmask_b32 v64, 0, v64, vcc")
wave_reduce("v_add_f32", "v64", 40)
e("    v_rcp_f32 v64, v64")
e("    v_sub_f32 v72, v72, v76")
e("    v_mul_f32 v72, 0x3fb8aa3b, v72")
e("    v_exp_f32 v72, v72")
e("    s_nop 0")
e("    v_mul_f32 v68, v68, v72")
e("    v_mul_f32 v68, v68, v64")
e("    v_lshlrev_b32 v9, 2, v0")
e(f"    ds_write_b32 v9, v68 offset:{LDS_RED}")
e("    s_waitcnt lgkmcnt(0)")
e("    s_barrier")
e("    v_and_b32 v9, 31, v2")
e("    v_lshlrev_b32 v9, 6, v9")
e("    s_lshl_b32 s47, s14, 3")
e("    v_add_u32 v9, s47, v9")
e(f"    ds_read_b64 v[70:71], v9 offset:{LDS_RED}")
e("    s_waitcnt lgkmcnt(0)")
e("    v_cmp_gt_u32 vcc, 32, v2")
e("    s_nop 1")
e("    v_cndmask_b32 v70, 0, v70, vcc")
e("    v_cndmask_b32 v71, 0, v71, vcc")
wave_reduce("v_add_f32", "v70", 40)
wave_reduce("v_add_f32", "v71", 40)
rne_bf16("v70")
rne_bf16("v71")
for i in range(4):
    e(f"    v_lshlrev_b32 v80, 16, v{96+i}")
    e(f"    v_and_b32 v81, 0xffff0000, v{96+i}")
    e(f"    v_mul_f32 v{84+2*i}, v80, v70")
    e(f"    v_mul_f32 v{85+2*i}, v81, v70")
    e(f"    v_lshlrev_b32 v80, 16, v{100+i}")
    e(f"    v_and_b32 v81, 0xffff0000, v{100+i}")
    e(f"    v_fmac_f32 v{84+2*i}, v80, v71")
    e(f"    v_fmac_f32 v{85+2*i}, v81, v71")
e("    v_add_f32 v48, v48, v49")
e("    v_add_f32 v56, v56, v57")
for ks in range(2, 8):
    e(f"    v_add_f32 v48, v48, v{48+ks}")
    e(f"    v_add_f32 v56, v56, v{56+ks}")
rne_bf16("v48")
rne_bf16("v56")
e("    v_mul_f32 v49, 0xbfb8aa3b, v48")
e("    v_exp_f32 v49, v49")
e("    s_nop 0")
e("    v_add_f32 v49, 1.0, v49")
e("    v_rcp_f32 v49, v49")
e("    s_nop 0")
rne_bf16("v49")
e("    v_mul_f32 v49, v49, v56")
rne_bf16("v49")
for i in range(4):
    e(f"    v_lshlrev_b32 v80, 16, v{104+i}")
    e(f"    v_and_b32 v81, 0xffff0000, v{104+i}")
    e(f"    v_mul_f32 v{92+2*i}, v80, v49")
    e(f"    v_mul_f32 v{93+2*i}, v81, v49")
e("    s_mul_i32 s47, s14, 1792")
e("    v_lshlrev_b32 v9, 5, v2")
e("    v_add_u32 v9, s47, v9")
e("    v_cmp_gt_u32 vcc, 56, v2")
e("    s_and_saveexec_b64 s[42:43], vcc")
e(f"    ds_write_b128 v9, v[84:87] offset:{LDS_ACC}")
e(f"    ds_write_b128 v9, v[88:91] offset:{LDS_ACC+16}")
e("    s_cmp_ge_u32 s14, 7")
e("    s_cbranch_scc1 outp_skipb")
e(f"    ds_write_b128 v9, v[92:95] offset:{LDS_ACC+8*1792}")
e(f"    ds_write_b128 v9, v[96:99] offset:{LDS_ACC+8*1792+16}")
e("outp_skipb:")
e("    s_mov_b64 exec, s[42:43]")
e("    s_waitcnt lgkmcnt(0)")
e("    s_barrier")
e("    v_cmp_gt_u32 vcc, 448, v0")
e("    s_and_saveexec_b64 s[42:43], vcc")
e("    s_cbranch_execz outp_noatom")
e("    v_lshlrev_b32 v9, 2, v0")
for r in range(15):
    e(f"    ds_read_b32 v{100+r}, v9 offset:{LDS_ACC + r*1792}")
e("    s_waitcnt lgkmcnt(0)")
for r in range(1, 8):
    e(f"    v_add_f32 v100, v100, v{100+r}")
for r in range(9, 15):
    e(f"    v_add_f32 v108, v108, v{100+r}")
e("    s_lshl_b32 s47, s15, 12")
e(f"    s_add_u32 s47, s47, {WS_ACC}")
e("    v_add_u32 v9, s47, v9")
e("    global_atomic_add_f32 v9, v100, s[86:87] sc1")
e("    global_atomic_add_f32 v9, v108, s[86:87] offset:2048 sc1")
e("outp_noatom:")
e("    s_mov_b64 exec, s[42:43]")
e("    s_waitcnt vmcnt(0)")
e("    s_barrier")
e("    s_branch k_end")

e("sync_wave:")
e("    s_lshl_b32 s17, s15, 2")
e(f"    v_mov_b32 v5, s17")
e("sync_pollq:")
e(f"    global_load_dword v6, v5, s[84:85] offset:{DBG_Q} sc1")
e("    s_waitcnt vmcnt(0)")
e("    v_readfirstlane_b32 s18, v6")
e("    s_cmp_ge_u32 s18, 64")
e("    s_cbranch_scc1 sync_q_ok")
e("    s_sleep 2")
e("    s_branch sync_pollq")
e("sync_q_ok:")
e("    s_barrier")
e("    s_barrier")
e("    s_barrier")
e("    s_barrier")
e("    v_mov_b32 v7, 1")
e("    s_mov_b64 exec, 1")
e(f"    global_atomic_add v5, v7, s[84:85] offset:{DBG_P} sc1")
e("    s_mov_b64 exec, -1")
e("sync_pollp:")
e(f"    global_load_dword v6, v5, s[84:85] offset:{DBG_P} sc1")
e("    s_waitcnt vmcnt(0)")
e("    v_readfirstlane_b32 s18, v6")
e("    s_cmp_ge_u32 s18, 32")
e("    s_cbranch_scc1 sync_p_ok")
e("    s_sleep 1")
e("    s_branch sync_pollp")
e("sync_p_ok:")
e("    v_lshlrev_b32 v8, 2, v2")
e("sync_pollg:")
e("    v_mov_b32 v6, 56")
e("    s_mov_b64 exec, 0xff")
e(f"    global_load_dword v6, v8, s[84:85] offset:{DBG_G} sc1")
e("    s_mov_b64 exec, -1")
e("    s_waitcnt vmcnt(0)")
e("    v_cmp_gt_u32 vcc, 56, v6")
e("    s_cbranch_vccz sync_g_ok")
e("    s_sleep 1")
e("    s_branch sync_pollg")
e("sync_g_ok:")
e("    s_barrier")
e("    s_barrier")
e("    s_barrier")
e("    s_barrier")
e("    v_mov_b32 v9, 0")
e("    s_mov_b64 exec, 1")
e(f"    global_atomic_add v10, v9, v7, s[84:85] offset:{DBG_F} sc0 sc1")
e("    s_mov_b64 exec, -1")
e("    s_waitcnt vmcnt(0)")
e("    v_readfirstlane_b32 s18, v10")
e("    s_cmp_lg_u32 s18, 255")
e("    s_cbranch_scc1 k_end")
srd(32, 64, 896)
srd(44, 82, 896)
e("    v_lshlrev_b32 v5, 2, v2")
for c in range(7):
    for sh in range(8):
        e(f"    s_mov_b32 s40, {WS_ACC + sh*4096 + c*256}")
        e(f"    buffer_load_dword v{16+sh}, v5, s[36:39], s40 offen sc1")
        e(f"    buffer_load_dword v{24+sh}, v5, s[36:39], s40 offen offset:2048 sc1")
    e("    v_lshlrev_b32 v6, 1, v2")
    e(f"    buffer_load_ushort v32, v6, s[32:35], 0 offen offset:{c*128}")
    e("    s_waitcnt vmcnt(0)")
    for sh in range(1, 8):
        e(f"    v_add_f32 v16, v16, v{16+sh}")
        e(f"    v_add_f32 v24, v24, v{24+sh}")
    rne_bf16("v16")
    rne_bf16("v24")
    e("    v_lshlrev_b32 v32, 16, v32")
    e("    v_add_f32 v32, v32, v16")
    rne_bf16("v32")
    e("    v_add_f32 v32, v32, v24")
    e("    v_cvt_pk_bf16_f32 v32, v32, v32")
    e(f"    buffer_store_short v32, v6, s[44:47], 0 offen offset:{c*128}")
e("k_end:")
e("    s_endpgm")
e('.section .rodata,"a"')
e(".p2align 6")
e(f".amdhsa_kernel {NAME}")
e(f"  .amdhsa_next_free_vgpr 128")
e(f"  .amdhsa_next_free_sgpr 96")
e(f"  .amdhsa_accum_offset 128")
e(f"  .amdhsa_group_segment_fixed_size 0")
e(f"  .amdhsa_kernarg_size 96")
e(f"  .amdhsa_user_sgpr_count 2")
e(f"  .amdhsa_user_sgpr_kernarg_segment_ptr 1")
e(f"  .amdhsa_system_sgpr_workgroup_id_x 1")
e(f".end_amdhsa_kernel")
open(sys.argv[1], "w").write("\n".join(L) + "\n")
```

```python
import sys

L = []
def e(s=""):
    L.append(s)

WS_QP   = 0x00000
WS_GUP  = 0x20000
WS_OP   = 0x40000
WS_ML   = 0xC0000
WS_ACC  = 0x100000
WS_SIZE = 1073741824

DBG_Q = 0
DBG_P = 32
DBG_G = 64
DBG_F = 96

LDS_QS = 0
LDS_SC = 1024
LDS_PB = 2048
LDS_SCR = 4096
LDS_K = 12288
LDS_V = 12288 + 67584
LDS_RED = 12288
LDS_ACC = 12288 + 2048
LDS_TOTAL = 12288 + 2*67584

def wave_reduce(op, v, sa):
    e(f"    s_nop 1")
    e(f"    {op}_dpp {v}, {v}, {v} quad_perm:[1,0,3,2] row_mask:0xf bank_mask:0xf")
    e(f"    s_nop 1")
    e(f"    {op}_dpp {v}, {v}, {v} quad_perm:[2,3,0,1] row_mask:0xf bank_mask:0xf")
    e(f"    s_nop 1")
    e(f"    {op}_dpp {v}, {v}, {v} row_half_mirror row_mask:0xf bank_mask:0xf")
    e(f"    s_nop 1")
    e(f"    {op}_dpp {v}, {v}, {v} row_mirror row_mask:0xf bank_mask:0xf")
    e(f"    s_nop 1")
    e(f"    v_readlane_b32 s{sa}, {v}, 0")
    e(f"    v_readlane_b32 s{sa+1}, {v}, 16")
    e(f"    v_readlane_b32 s{sa+2}, {v}, 32")
    e(f"    v_readlane_b32 s{sa+3}, {v}, 48")
    e(f"    s_nop 1")
    e(f"    v_mov_b32 {v}, s{sa}")
    e(f"    {op} {v}, s{sa+1}, {v}")
    e(f"    {op} {v}, s{sa+2}, {v}")
    e(f"    {op} {v}, s{sa+3}, {v}")

def rne_bf16(v):
    e(f"    v_cvt_pk_bf16_f32 {v}, {v}, {v}")
    e(f"    v_lshlrev_b32 {v}, 16, {v}")

def srd(d, base, size):
    e(f"    s_mov_b32 s{d}, s{base}")
    e(f"    s_mov_b32 s{d+1}, s{base+1}")
    e(f"    s_mov_b32 s{d+2}, {size}")
    e(f"    s_mov_b32 s{d+3}, 0x00020000")

DIAG = len(sys.argv) > 2
WS_STAMP = 0x200000
def stamp(i):
    if not DIAG: return
    e(f"    s_memrealtime s[90:91]")
    e(f"    s_waitcnt lgkmcnt(0)")
    e(f"    v_mov_b32 v124, s90")
    e(f"    v_mov_b32 v125, 0")
    e(f"    s_lshl_b32 s92, s2, 6")
    e(f"    s_add_u32 s92, s92, {WS_STAMP + i*4}")
    e(f"    s_cmp_lg_u32 s14, {8 if i >= 9 else 0}")
    e(f"    s_cbranch_scc1 stamp_skip{i}")
    e(f"    s_mov_b64 exec, 1")
    e(f"    buffer_store_dword v124, v125, s[36:39], s92 offen")
    e(f"    s_mov_b64 exec, -1")
    e(f"stamp_skip{i}:")
NAME = "parallel_sum__sliding_block_cached__glu_gated_glu__decode_kernel"
e(f"; @launch grid=(256,1,1) block=(576,1,1) lds={LDS_TOTAL}")
e('.amdgcn_target "amdgcn-amd-amdhsa--gfx950"')
e(".text")
e(f".globl {NAME}")
e(".p2align 8")
e(f".type {NAME},@function")
e(f"{NAME}:")
e("    s_cmp_ge_u32 s2, 256")
e("    s_cbranch_scc1 k_end")
e("    s_load_dwordx8 s[64:71], s[0:1], 0")
e("    s_load_dwordx8 s[72:79], s[0:1], 32")
e("    s_load_dwordx8 s[80:87], s[0:1], 64")
e("    v_lshrrev_b32 v1, 6, v0")
e("    v_and_b32 v2, 63, v0")
e("    s_nop 0")
e("    v_readfirstlane_b32 s14, v1")
e("    s_lshr_b32 s15, s2, 5")
e("    s_and_b32 s16, s2, 31")
e("    s_waitcnt lgkmcnt(0)")
srd(36, 86, WS_SIZE)
stamp(0)
e("    s_cmp_eq_u32 s14, 8")
e("    s_cbranch_scc1 sync_wave")
e("    s_lshl_b32 s17, s15, 25")
e("    s_lshl_b32 s18, s16, 16")
e("    s_add_u32 s17, s17, s18")
e(f"    s_add_u32 s17, s17, {61440*512}")
e("    s_add_u32 s4, s66, s17")
e("    s_addc_u32 s5, s67, 0")
e("    s_add_u32 s6, s68, s17")
e("    s_addc_u32 s7, s69, 0")
srd(20, 4, 65536)
srd(24, 6, 65536)
srd(32, 64, 896)
srd(44, 72, 4096*896)
srd(48, 80, 1792*896)
e("    v_and_b32 v3, 15, v2")
e("    v_lshrrev_b32 v4, 4, v2")
e("    s_cmp_ge_u32 s14, 4")
e("    s_cbranch_scc1 proj_done")
e("    s_cmp_ge_u32 s14, 2")
e("    s_cbranch_scc1 proj_gu")
e("    s_lshl_b32 s17, s16, 1")
e("    s_add_u32 s17, s17, s14")
e("    s_lshr_b32 s18, s17, 3")
e("    s_and_b32 s19, s17, 7")
e("    s_mov_b32 s28, s70")
e("    s_mov_b32 s29, s71")
e(f"    s_mov_b32 s30, {448*8192}")
e("    s_mov_b32 s52, 8192")
e("    s_lshl_b32 s53, s15, 10")
e("    s_lshl_b32 s54, s18, 7")
e("    s_add_u32 s53, s53, s54")
e("    s_lshl_b32 s54, s19, 14")
e("    s_lshl_b32 s55, s15, 11")
e("    s_add_u32 s54, s54, s55")
e("    s_lshl_b32 s55, s18, 8")
e("    s_add_u32 s54, s54, s55")
e(f"    s_add_u32 s54, s54, {WS_QP}")
e("    s_lshl_b32 s56, s15, 2")
e(f"    s_add_u32 s56, s56, {DBG_Q}")
e("    s_branch proj_sel_done")
e("proj_gu:")
e("    s_cmp_ge_u32 s2, 224")
e("    s_cbranch_scc1 proj_done")
e("    s_lshl_b32 s17, s2, 1")
e("    s_add_u32 s17, s17, s14")
e("    s_sub_u32 s17, s17, 2")
e("    s_lshr_b32 s18, s17, 3")
e("    s_and_b32 s19, s17, 7")
e("    s_mov_b32 s52, 3584")
e(f"    s_mov_b32 s30, {448*3584}")
e("    s_mul_i32 s54, s19, 14336")
e("    s_lshl_b32 s55, s18, 8")
e("    s_add_u32 s54, s54, s55")
e(f"    s_add_u32 s54, s54, {WS_GUP}")
e("    s_and_b32 s56, s17, 7")
e("    s_lshl_b32 s56, s56, 2")
e(f"    s_add_u32 s56, s56, {DBG_G}")
e("    s_cmp_lt_u32 s18, 28")
e("    s_cbranch_scc0 proj_up")
e("    s_mov_b32 s28, s76")
e("    s_mov_b32 s29, s77")
e("    s_lshl_b32 s53, s18, 7")
e("    s_branch proj_sel_done")
e("proj_up:")
e("    s_mov_b32 s28, s78")
e("    s_mov_b32 s29, s79")
e("    s_sub_u32 s55, s18, 28")
e("    s_lshl_b32 s53, s55, 7")
e("proj_sel_done:")
e("    s_mov_b32 s31, 0x00020000")
e("    v_lshlrev_b32 v5, 1, v2")
for j in range(7):
    e(f"    buffer_load_ushort v{10+j}, v5, s[32:35], 0 offen offset:{j*128}")
e("    v_lshrrev_b32 v6, 3, v2")
e("    s_mul_i32 s57, s19, 56")
e("    v_add_u32 v5, s57, v6")
e("    v_lshlrev_b32 v5, 1, v5")
for j in range(7):
    e(f"    buffer_load_ushort v{20+j}, v5, s[32:35], 0 offen offset:{j*16}")
e("    v_mul_lo_u32 v7, v6, s52")
e("    v_and_b32 v8, 7, v2")
e("    v_lshlrev_b32 v8, 4, v8")
e("    v_add_u32 v7, v7, v8")
e("    s_mul_i32 s57, s57, s52")
e("    s_add_u32 s57, s57, s53")
e("    s_lshl_b32 s58, s52, 3")
for j in range(7):
    e(f"    buffer_load_dwordx4 v[{32+4*j}:{35+4*j}], v7, s[28:31], s57 offen")
    if j < 6:
        e("    s_add_u32 s57, s57, s58")
e("    s_waitcnt vmcnt(14)")
for j in range(7):
    e(f"    v_lshlrev_b32 v{10+j}, 16, v{10+j}")
e("    v_add_f32 v108, v10, v11")
for j in range(2, 7):
    e(f"    v_add_f32 v108, v108, v{10+j}")
wave_reduce("v_add_f32", "v108", 40)
e("    v_mul_f32 v108, 0x3b124925, v108")
e("    v_sub_f32 v109, v10, v108")
e("    v_mul_f32 v109, v109, v109")
for j in range(1, 7):
    e(f"    v_sub_f32 v17, v{10+j}, v108")
    e(f"    v_fmac_f32 v109, v17, v17")
wave_reduce("v_add_f32", "v109", 40)
e("    v_mul_f32 v109, 0x3b124925, v109")
rne_bf16("v108")
rne_bf16("v109")
e("    v_add_f32 v109, 0x3727c5ac, v109")
rne_bf16("v109")
e("    v_sqrt_f32 v109, v109")
e("    s_nop 0")
rne_bf16("v109")
e("    v_rcp_f32 v109, v109")
e("    s_waitcnt vmcnt(7)")
for j in range(7):
    e(f"    v_lshlrev_b32 v{20+j}, 16, v{20+j}")
    e(f"    v_sub_f32 v{20+j}, v{20+j}, v108")
    rne_bf16(f"v{20+j}")
    e(f"    v_mul_f32 v{20+j}, v{20+j}, v109")
    rne_bf16(f"v{20+j}")
for i in range(8):
    e(f"    v_mov_b32 v{64+i}, 0")
for j in range(7):
    e(f"    s_waitcnt vmcnt({6-j})")
    for i in range(4):
        r = 32 + 4*j + i
        e(f"    v_lshlrev_b32 v72, 16, v{r}")
        e(f"    v_and_b32 v73, 0xffff0000, v{r}")
        e(f"    v_fmac_f32 v{64+2*i}, v72, v{20+j}")
        e(f"    v_fmac_f32 v{65+2*i}, v73, v{20+j}")
e("    s_lshl_b32 s57, s14, 11")
e(f"    s_add_u32 s57, s57, {LDS_SCR}")
e("    v_lshlrev_b32 v74, 8, v6")
e("    v_lshlrev_b32 v75, 1, v8")
e("    v_add3_u32 v74, v74, v75, s57")
e("    ds_write_b128 v74, v[64:67]")
e("    ds_write_b128 v74, v[68:71] offset:16")
e("    v_lshlrev_b32 v76, 2, v2")
e("    v_add_u32 v77, s57, v76")
e("    s_waitcnt lgkmcnt(0)")
for g in range(8):
    e(f"    ds_read_b32 v{80+g}, v77 offset:{g*256}")
e("    s_waitcnt lgkmcnt(0)")
e("    v_add_f32 v80, v80, v81")
for g in range(2, 8):
    e(f"    v_add_f32 v80, v80, v{80+g}")
e("    buffer_store_dword v80, v76, s[36:39], s54 offen sc1")
e("    s_or_b32 s57, s16, s14")
e("    s_cmp_lg_u32 s57, 0")
e("    s_cbranch_scc1 proj_nozero")
e("    v_mov_b32 v84, 0")
e("    v_mov_b32 v85, 0")
e("    v_mov_b32 v86, 0")
e("    v_mov_b32 v87, 0")
e("    v_lshlrev_b32 v88, 4, v2")
e("    s_lshl_b32 s57, s15, 12")
e(f"    s_add_u32 s57, s57, {WS_ACC}")
for t in range(4):
    e(f"    buffer_store_dwordx4 v[84:87], v88, s[36:39], s57 offen offset:{t*1024} sc1")
e("proj_nozero:")
e("    s_waitcnt vmcnt(0)")
e("    v_mov_b32 v84, 1")
e("    v_mov_b32 v85, s56")
e("    s_mov_b64 exec, 1")
e("    global_atomic_add v85, v84, s[84:85] sc1")
e("    s_mov_b64 exec, -1")
e("proj_done:")
stamp(1)
e("    s_lshl_b32 s18, s14, 13")
e("    v_lshlrev_b32 v6, 4, v4")
e("    v_lshlrev_b32 v5, 4, v2")
e("    v_add_u32 v5, s18, v5")
e("    v_add_u32 v7, 4096, v5")
for i in range(8):
    e(f"    buffer_load_dwordx4 v[{32+4*i}:{35+4*i}], v{5 if i<4 else 7}, s[20:23], 0 offen offset:{(i%4)*1024}")
for i in range(8):
    e(f"    buffer_load_dwordx4 v[{64+4*i}:{67+4*i}], v{5 if i<4 else 7}, s[24:27], 0 offen offset:{(i%4)*1024}")
e("    s_lshr_b32 s57, s2, 4")
e("    s_lshl_b32 s57, s57, 8")
e("    s_and_b32 s58, s2, 15")
e("    s_lshl_b32 s58, s58, 4")
e("    s_add_u32 s57, s57, s58")
e("    s_lshl_b32 s58, s14, 1")
e("    s_add_u32 s57, s57, s58")
e("    s_mul_i32 s57, s57, 896")
e("    s_mul_i32 s59, s2, 7")
e("    s_add_u32 s59, s59, s14")
e("    s_mul_i32 s58, s59, 896")
e("    v_lshlrev_b32 v9, 4, v2")
e("    v_cmp_gt_u32 vcc, 56, v2")
e("    s_and_saveexec_b64 s[42:43], vcc")
e("    buffer_load_dwordx4 v[96:99], v9, s[44:47], s57 offen")
e("    buffer_load_dwordx4 v[100:103], v9, s[44:47], s57 offen offset:896")
e("    buffer_load_dwordx4 v[104:107], v9, s[48:51], s58 offen")
e("    s_mov_b64 exec, s[42:43]")
stamp(2)
e("    s_barrier")
stamp(3)
e("    s_lshl_b32 s19, s15, 11")
e("    v_lshlrev_b32 v8, 2, v0")
e("    v_add_u32 v8, s19, v8")
for ks in range(8):
    e(f"    s_mov_b32 s40, {WS_QP + ks*16384}")
    e(f"    buffer_load_dword v{10+ks}, v8, s[36:39], s40 offen sc1")
e("    s_waitcnt vmcnt(0)")
stamp(4)
e("    v_add_f32 v10, v10, v11")
for ks in range(2, 8):
    e(f"    v_add_f32 v10, v10, v{10+ks}")
e("    v_cvt_pk_bf16_f32 v10, v10, v10")
e("    v_lshlrev_b32 v9, 1, v0")
e(f"    ds_write_b16 v9, v10 offset:{LDS_QS}")
e("    v_lshrrev_b32 v9, 5, v2")
e("    s_lshl_b32 s19, s14, 4")
e("    v_add_u32 v9, s19, v9")
e("    v_mul_u32_u24 v9, 528, v9")
e("    v_and_b32 v11, 31, v2")
e("    v_lshlrev_b32 v11, 4, v11")
e("    v_add_u32 v9, v9, v11")
e(f"    v_add_u32 v9, {LDS_K}, v9")
e(f"    v_add_u32 v11, {LDS_V-LDS_K}, v9")
for i in range(8):
    e(f"    ds_write_b128 v9, v[{32+4*i}:{35+4*i}] offset:{i*1056}")
for i in range(8):
    e(f"    ds_write_b128 v11, v[{64+4*i}:{67+4*i}] offset:{i*1056}")
e("    s_waitcnt lgkmcnt(0)")
e("    s_barrier")
e("    v_and_b32 v9, 1, v2")
e("    v_lshlrev_b32 v9, 9, v9")
e("    v_add_u32 v9, v9, v6")
for kk in range(8):
    e(f"    ds_read_b128 v[{64+4*kk}:{67+4*kk}], v9 offset:{LDS_QS + kk*64}")
e("    s_lshl_b32 s19, s14, 4")
e("    v_add_u32 v11, s19, v3")
e("    v_mul_u32_u24 v11, 528, v11")
e("    v_add_u32 v11, v11, v6")
e(f"    v_add_u32 v11, {LDS_K}, v11")
for kk in range(8):
    e(f"    ds_read_b128 v[{32+4*kk}:{35+4*kk}], v11 offset:{kk*64}")
for i in range(4):
    e(f"    v_mov_b32 v{112+i}, 0")
e("    s_waitcnt lgkmcnt(0)")
e("    s_nop 1")
for kk in range(8):
    e(f"    v_mfma_f32_16x16x32_bf16 v[112:115], v[{64+4*kk}:{67+4*kk}], v[{32+4*kk}:{35+4*kk}], v[112:115]")
e("    s_nop 7")
e("    s_nop 1")
rne_bf16("v112")
rne_bf16("v113")
e("    v_mul_f32 v112, 0x3d800000, v112")
e("    v_mul_f32 v113, 0x3d800000, v113")
e("    s_lshl_b32 s19, s14, 6")
e("    v_lshlrev_b32 v9, 2, v2")
e("    v_add_u32 v9, s19, v9")
e("    s_mov_b64 exec, 0xffff")
e(f"    ds_write_b32 v9, v112 offset:{LDS_SC}")
e(f"    ds_write_b32 v9, v113 offset:{LDS_SC+512}")
e("    s_mov_b64 exec, -1")
e("    s_waitcnt lgkmcnt(0)")
e("    s_barrier")
stamp(5)
e("    v_lshlrev_b32 v9, 3, v2")
e(f"    ds_read_b64 v[10:11], v9 offset:{LDS_SC}")
e(f"    ds_read_b64 v[12:13], v9 offset:{LDS_SC+512}")
e("    s_waitcnt lgkmcnt(0)")
e("    v_max_f32 v14, v10, v11")
e("    v_max_f32 v15, v12, v13")
wave_reduce("v_max_f32", "v14", 40)
wave_reduce("v_max_f32", "v15", 40)
for (a, m) in ((10, 14), (11, 14), (12, 15), (13, 15)):
    e(f"    v_sub_f32 v{a}, v{a}, v{m}")
    e(f"    v_mul_f32 v{a}, 0x3fb8aa3b, v{a}")
    e(f"    v_exp_f32 v{a}, v{a}")
e("    s_nop 0")
e("    v_add_f32 v16, v10, v11")
e("    v_add_f32 v17, v12, v13")
wave_reduce("v_add_f32", "v16", 40)
wave_reduce("v_add_f32", "v17", 40)
e("    v_cvt_pk_bf16_f32 v18, v10, v11")
e("    v_cvt_pk_bf16_f32 v19, v12, v13")
e("    v_lshlrev_b32 v9, 2, v2")
e(f"    ds_write_b32 v9, v18 offset:{LDS_PB}")
e(f"    ds_write_b32 v9, v19 offset:{LDS_PB+256}")
e("    s_waitcnt lgkmcnt(0)")
e("    v_and_b32 v9, 1, v2")
e("    v_lshlrev_b32 v9, 8, v9")
e("    v_add_u32 v9, v9, v6")
for ks in range(4):
    e(f"    ds_read_b128 v[{64+4*ks}:{67+4*ks}], v9 offset:{LDS_PB + ks*64}")
e("    v_lshlrev_b32 v20, 3, v4")
e("    v_lshrrev_b32 v21, 2, v3")
e("    v_add_u32 v20, v20, v21")
e("    v_mul_u32_u24 v20, 528, v20")
e("    v_and_b32 v22, 3, v3")
e("    v_lshlrev_b32 v22, 3, v22")
e("    v_add_u32 v20, v20, v22")
e("    s_lshl_b32 s19, s14, 6")
e(f"    s_add_u32 s19, s19, {LDS_V}")
e("    v_add_u32 v20, s19, v20")
for nt in range(2):
    for i in range(4):
        e(f"    v_mov_b32 v{116+i}, 0")
    for ks in range(4):
        e(f"    ds_read_b64_tr_b16 v[{80+4*ks}:{81+4*ks}], v20 offset:{ks*16896 + nt*32}")
        e(f"    ds_read_b64_tr_b16 v[{82+4*ks}:{83+4*ks}], v20 offset:{ks*16896 + nt*32 + 2112}")
    e("    s_waitcnt lgkmcnt(0)")
    for ks in range(4):
        e(f"    v_mfma_f32_16x16x32_bf16 v[116:119], v[{64+4*ks}:{67+4*ks}], v[{80+4*ks}:{83+4*ks}], v[116:119]")
    e("    s_nop 7")
    e("    s_nop 1")
    e("    s_lshl_b32 s40, s2, 11")
    e(f"    s_add_u32 s40, s40, {WS_OP + nt*64}")
    e("    s_lshl_b32 s41, s14, 7")
    e("    s_add_u32 s40, s40, s41")
    e("    v_lshlrev_b32 v9, 2, v2")
    e("    s_mov_b64 exec, 0xffff")
    e("    buffer_store_dword v116, v9, s[36:39], s40 offen sc1")
    e("    buffer_store_dword v117, v9, s[36:39], s40 offen offset:1024 sc1")
    e("    s_mov_b64 exec, -1")
e("    s_cmp_lg_u32 s14, 0")
e("    s_cbranch_scc1 attn_noml")
e("    v_mov_b32 v24, v14")
e("    v_mov_b32 v25, v15")
e("    v_mov_b32 v26, v16")
e("    v_mov_b32 v27, v17")
e("    v_mov_b32 v9, 0")
e("    s_lshl_b32 s40, s2, 4")
e(f"    s_add_u32 s40, s40, {WS_ML}")
e("    s_mov_b64 exec, 1")
e("    buffer_store_dwordx4 v[24:27], v9, s[36:39], s40 offen sc1")
e("    s_mov_b64 exec, -1")
e("attn_noml:")
e("    s_waitcnt vmcnt(0)")
e("    s_barrier")
stamp(6)
e("    s_barrier")
stamp(7)
e("    s_lshr_b32 s57, s2, 4")
e("    s_and_b32 s58, s2, 15")
e("    s_and_b32 s60, s57, 1")
e("    s_lshl_b32 s46, s59, 2")
e("    v_mov_b32 v4, 0")
for ks in range(8):
    e(f"    s_add_u32 s47, s46, {WS_GUP + ks*14336}")
    e(f"    buffer_load_dword v{48+ks}, v4, s[36:39], s47 offen sc1")
    e(f"    s_add_u32 s48, s47, {1792*4}")
    e(f"    buffer_load_dword v{56+ks}, v4, s[36:39], s48 offen sc1")
e("    s_lshl_b32 s47, s15, 9")
e(f"    s_add_u32 s47, s47, {WS_ML}")
e("    v_and_b32 v5, 31, v2")
e("    v_lshlrev_b32 v5, 4, v5")
e("    buffer_load_dwordx4 v[64:67], v5, s[36:39], s47 offen sc1")
e("    v_lshrrev_b32 v6, 4, v0")
e("    v_and_b32 v7, 15, v0")
e("    v_lshlrev_b32 v8, 11, v6")
e("    v_lshlrev_b32 v9, 2, v7")
e("    v_add_u32 v8, v8, v9")
e("    s_lshl_b32 s61, s15, 16")
e("    s_lshl_b32 s48, s60, 10")
e("    s_add_u32 s61, s61, s48")
e("    s_lshl_b32 s48, s58, 6")
e("    s_add_u32 s61, s61, s48")
e(f"    s_add_u32 s61, s61, {WS_OP}")
e("    buffer_load_dword v68, v8, s[36:39], s61 offen sc1")
e("    v_lshlrev_b32 v9, 4, v6")
e("    buffer_load_dwordx4 v[72:75], v9, s[36:39], s47 offen sc1")
e("    s_waitcnt vmcnt(0)")
e("    s_cmp_eq_u32 s60, 1")
e("    s_cselect_b64 vcc, -1, 0")
e("    v_cndmask_b32 v64, v64, v65, vcc")
e("    v_cndmask_b32 v66, v66, v67, vcc")
e("    v_cndmask_b32 v72, v72, v73, vcc")
e("    v_mov_b32 v76, v64")
wave_reduce("v_max_f32", "v76", 40)
e("    v_sub_f32 v64, v64, v76")
e("    v_mul_f32 v64, 0x3fb8aa3b, v64")
e("    v_exp_f32 v64, v64")
e("    s_nop 0")
e("    v_mul_f32 v64, v64, v66")
e("    v_cmp_gt_u32 vcc, 32, v2")
e("    s_nop 1")
e("    v_cndmask_b32 v64, 0, v64, vcc")
wave_reduce("v_add_f32", "v64", 40)
e("    v_rcp_f32 v64, v64")
e("    v_sub_f32 v72, v72, v76")
e("    v_mul_f32 v72, 0x3fb8aa3b, v72")
e("    v_exp_f32 v72, v72")
e("    s_nop 0")
e("    v_mul_f32 v68, v68, v72")
e("    v_mul_f32 v68, v68, v64")
e("    v_lshlrev_b32 v9, 2, v0")
e(f"    ds_write_b32 v9, v68 offset:{LDS_RED}")
e("    s_waitcnt lgkmcnt(0)")
e("    s_barrier")
e("    v_and_b32 v9, 31, v2")
e("    v_lshlrev_b32 v9, 6, v9")
e("    s_lshl_b32 s47, s14, 3")
e("    v_add_u32 v9, s47, v9")
e(f"    ds_read_b64 v[70:71], v9 offset:{LDS_RED}")
e("    s_waitcnt lgkmcnt(0)")
e("    v_cmp_gt_u32 vcc, 32, v2")
e("    s_nop 1")
e("    v_cndmask_b32 v70, 0, v70, vcc")
e("    v_cndmask_b32 v71, 0, v71, vcc")
wave_reduce("v_add_f32", "v70", 40)
wave_reduce("v_add_f32", "v71", 40)
rne_bf16("v70")
rne_bf16("v71")
for i in range(4):
    e(f"    v_lshlrev_b32 v80, 16, v{96+i}")
    e(f"    v_and_b32 v81, 0xffff0000, v{96+i}")
    e(f"    v_mul_f32 v{84+2*i}, v80, v70")
    e(f"    v_mul_f32 v{85+2*i}, v81, v70")
    e(f"    v_lshlrev_b32 v80, 16, v{100+i}")
    e(f"    v_and_b32 v81, 0xffff0000, v{100+i}")
    e(f"    v_fmac_f32 v{84+2*i}, v80, v71")
    e(f"    v_fmac_f32 v{85+2*i}, v81, v71")
e("    v_add_f32 v48, v48, v49")
e("    v_add_f32 v56, v56, v57")
for ks in range(2, 8):
    e(f"    v_add_f32 v48, v48, v{48+ks}")
    e(f"    v_add_f32 v56, v56, v{56+ks}")
rne_bf16("v48")
rne_bf16("v56")
e("    v_mul_f32 v49, 0xbfb8aa3b, v48")
e("    v_exp_f32 v49, v49")
e("    s_nop 0")
e("    v_add_f32 v49, 1.0, v49")
e("    v_rcp_f32 v49, v49")
e("    s_nop 0")
rne_bf16("v49")
e("    v_mul_f32 v49, v49, v56")
rne_bf16("v49")
for i in range(4):
    e(f"    v_lshlrev_b32 v80, 16, v{104+i}")
    e(f"    v_and_b32 v81, 0xffff0000, v{104+i}")
    e(f"    v_mul_f32 v{92+2*i}, v80, v49")
    e(f"    v_mul_f32 v{93+2*i}, v81, v49")
e("    s_mul_i32 s47, s14, 1792")
e("    v_lshlrev_b32 v9, 5, v2")
e("    v_add_u32 v9, s47, v9")
e("    v_cmp_gt_u32 vcc, 56, v2")
e("    s_and_saveexec_b64 s[42:43], vcc")
e(f"    ds_write_b128 v9, v[84:87] offset:{LDS_ACC}")
e(f"    ds_write_b128 v9, v[88:91] offset:{LDS_ACC+16}")
e("    s_cmp_ge_u32 s14, 7")
e("    s_cbranch_scc1 outp_skipb")
e(f"    ds_write_b128 v9, v[92:95] offset:{LDS_ACC+8*1792}")
e(f"    ds_write_b128 v9, v[96:99] offset:{LDS_ACC+8*1792+16}")
e("outp_skipb:")
e("    s_mov_b64 exec, s[42:43]")
e("    s_waitcnt lgkmcnt(0)")
e("    s_barrier")
e("    v_cmp_gt_u32 vcc, 448, v0")
e("    s_and_saveexec_b64 s[42:43], vcc")
e("    s_cbranch_execz outp_noatom")
e("    v_lshlrev_b32 v9, 2, v0")
for r in range(15):
    e(f"    ds_read_b32 v{100+r}, v9 offset:{LDS_ACC + r*1792}")
e("    s_waitcnt lgkmcnt(0)")
for r in range(1, 8):
    e(f"    v_add_f32 v100, v100, v{100+r}")
for r in range(9, 15):
    e(f"    v_add_f32 v108, v108, v{100+r}")
e("    s_lshl_b32 s47, s15, 12")
e(f"    s_add_u32 s47, s47, {WS_ACC}")
e("    v_add_u32 v9, s47, v9")
e("    global_atomic_add_f32 v9, v100, s[86:87] sc1")
e("    global_atomic_add_f32 v9, v108, s[86:87] offset:2048 sc1")
e("outp_noatom:")
e("    s_mov_b64 exec, s[42:43]")
e("    s_waitcnt vmcnt(0)")
e("    s_barrier")
stamp(8)
e("    s_branch k_end")

e("sync_wave:")
e("    s_lshl_b32 s17, s15, 2")
e(f"    v_mov_b32 v5, s17")
e("sync_pollq:")
e(f"    global_load_dword v6, v5, s[84:85] offset:{DBG_Q} sc1")
e("    s_waitcnt vmcnt(0)")
e("    v_readfirstlane_b32 s18, v6")
e("    s_cmp_ge_u32 s18, 64")
e("    s_cbranch_scc1 sync_q_ok")
e("    s_sleep 2")
e("    s_branch sync_pollq")
e("sync_q_ok:")
e("    s_barrier")
e("    s_barrier")
e("    s_barrier")
e("    s_barrier")
e("    v_mov_b32 v7, 1")
e("    s_mov_b64 exec, 1")
e(f"    global_atomic_add v5, v7, s[84:85] offset:{DBG_P} sc1")
e("    s_mov_b64 exec, -1")
e("sync_pollp:")
e(f"    global_load_dword v6, v5, s[84:85] offset:{DBG_P} sc1")
e("    s_waitcnt vmcnt(0)")
e("    v_readfirstlane_b32 s18, v6")
e("    s_cmp_ge_u32 s18, 32")
e("    s_cbranch_scc1 sync_p_ok")
e("    s_sleep 1")
e("    s_branch sync_pollp")
e("sync_p_ok:")
e("    v_lshlrev_b32 v8, 2, v2")
e("sync_pollg:")
e("    v_mov_b32 v6, 56")
e("    s_mov_b64 exec, 0xff")
e(f"    global_load_dword v6, v8, s[84:85] offset:{DBG_G} sc1")
e("    s_mov_b64 exec, -1")
e("    s_waitcnt vmcnt(0)")
e("    v_cmp_gt_u32 vcc, 56, v6")
e("    s_cbranch_vccz sync_g_ok")
e("    s_sleep 1")
e("    s_branch sync_pollg")
e("sync_g_ok:")
e("    s_barrier")
e("    s_barrier")
e("    s_barrier")
e("    s_barrier")
e("    v_mov_b32 v9, 0")
e("    s_mov_b64 exec, 1")
e(f"    global_atomic_add v10, v9, v7, s[84:85] offset:{DBG_F} sc0 sc1")
e("    s_mov_b64 exec, -1")
e("    s_waitcnt vmcnt(0)")
stamp(9)
e("    v_readfirstlane_b32 s18, v10")
e("    s_cmp_lg_u32 s18, 255")
e("    s_cbranch_scc1 k_end")
srd(32, 64, 896)
srd(44, 82, 896)
e("    v_lshlrev_b32 v5, 2, v2")
for c in range(7):
    for sh in range(8):
        e(f"    s_mov_b32 s40, {WS_ACC + sh*4096 + c*256}")
        e(f"    buffer_load_dword v{16+sh}, v5, s[36:39], s40 offen sc1")
        e(f"    buffer_load_dword v{24+sh}, v5, s[36:39], s40 offen offset:2048 sc1")
    e("    v_lshlrev_b32 v6, 1, v2")
    e(f"    buffer_load_ushort v32, v6, s[32:35], 0 offen offset:{c*128}")
    e("    s_waitcnt vmcnt(0)")
    for sh in range(1, 8):
        e(f"    v_add_f32 v16, v16, v{16+sh}")
        e(f"    v_add_f32 v24, v24, v{24+sh}")
    rne_bf16("v16")
    rne_bf16("v24")
    e("    v_lshlrev_b32 v32, 16, v32")
    e("    v_add_f32 v32, v32, v16")
    rne_bf16("v32")
    e("    v_add_f32 v32, v32, v24")
    e("    v_cvt_pk_bf16_f32 v32, v32, v32")
    e(f"    buffer_store_short v32, v6, s[44:47], 0 offen offset:{c*128}")
e("k_end:")
e("    s_endpgm")
e('.section .rodata,"a"')
e(".p2align 6")
e(f".amdhsa_kernel {NAME}")
e(f"  .amdhsa_next_free_vgpr 128")
e(f"  .amdhsa_next_free_sgpr 96")
e(f"  .amdhsa_accum_offset 128")
e(f"  .amdhsa_group_segment_fixed_size 0")
e(f"  .amdhsa_kernarg_size 96")
e(f"  .amdhsa_user_sgpr_count 2")
e(f"  .amdhsa_user_sgpr_kernarg_segment_ptr 1")
e(f"  .amdhsa_system_sgpr_workgroup_id_x 1")
e(f".end_amdhsa_kernel")
open(sys.argv[1], "w").write("\n".join(L) + "\n")
```
